```python
import torch

def _softmax(x, axis=-1):
    return torch.softmax(x, dim=axis)
def _gelu(x):
    return torch.nn.functional.gelu(x, approximate="tanh")
def _silu(x):
    return torch.nn.functional.silu(x)
def _sigmoid(x):
    return torch.sigmoid(x)
def _layernorm(x, axis=-1, eps=1e-5):
    m = x.mean(dim=axis, keepdim=True)
    v = x.var(dim=axis, keepdim=True, unbiased=False)
    return (x - m) / torch.sqrt(v + eps)
def _scatter_add(tgt, idx, src, axis=0):
    return tgt.clone().index_add_(axis, idx, src)
def _segment_sum(src, seg, n):
    out = torch.zeros((n,) + src.shape[1:], dtype=src.dtype)
    return out.index_add_(0, seg, src)
def _pad(x, pw):
    flat = tuple(v for pair in reversed(pw) for v in pair)
    return torch.nn.functional.pad(x, flat)

kernel_name = 'gated_mix__grouped_kv_mqa__grouped_kv_mqa__prompt'

def setup_inputs():

    _w = (lambda a: (lambda t: t.to(torch.bfloat16) if t.is_floating_point() else t)(torch.as_tensor(a)))
    def _A_setup():
        B, S, D, H = 1, 2048, 448, 16
        Dh = D // H
        return {
            "x": _w((lambda *s: torch.randn(*s, dtype=torch.bfloat16) * 0.05)(B, S, D)),
            "wq": _w((lambda *s: torch.randn(*s, dtype=torch.bfloat16) * 0.8)(D, H * Dh)),
            "wk": _w((lambda *s: torch.randn(*s, dtype=torch.bfloat16) * 0.8)(D, Dh)),
            "wv": _w((lambda *s: torch.randn(*s, dtype=torch.bfloat16) * 0.05)(D, Dh)),
            "wo": _w((lambda *s: torch.randn(*s, dtype=torch.bfloat16) * 0.05)(H * Dh, D)),
        }
    _A_in = _A_setup()

    def _B_setup():
        B, S, D, H = 1, 2048, 448, 16
        Dh = D // H
        return {
            "x": _w((lambda *s: torch.randn(*s, dtype=torch.bfloat16) * 0.05)(B, S, D)),
            "wq": _w((lambda *s: torch.randn(*s, dtype=torch.bfloat16) * 0.8)(D, H * Dh)),
            "wk": _w((lambda *s: torch.randn(*s, dtype=torch.bfloat16) * 0.8)(D, Dh)),
            "wv": _w((lambda *s: torch.randn(*s, dtype=torch.bfloat16) * 0.05)(D, Dh)),
            "wo": _w((lambda *s: torch.randn(*s, dtype=torch.bfloat16) * 0.05)(H * Dh, D)),
        }
    _B_in = _B_setup()

    return {
        "A_x": _A_in["x"],
        "A_wq": _A_in["wq"],
        "A_wk": _A_in["wk"],
        "A_wv": _A_in["wv"],
        "A_wo": _A_in["wo"],
        "B_x": _B_in["x"],
        "B_wq": _B_in["wq"],
        "B_wk": _B_in["wk"],
        "B_wv": _B_in["wv"],
        "B_wo": _B_in["wo"],
        "gate_w": _w((lambda *s: torch.randn(*s, dtype=torch.bfloat16) * 0.05)(448) * 16.0),
    }

def reference(A_x, A_wq, A_wk, A_wv, A_wo, B_x, B_wq, B_wk, B_wv, B_wo, gate_w):
    def _A_ref(x, wq, wk, wv, wo):
        B, S, D = x.shape
        H = 16
        Dh = D // H
        q = (lambda x, *d: x.permute(*d))((x @ wq).reshape(B, S, H, Dh), 0, 2, 1, 3)
        k = x @ wk
        v = x @ wv
        scores = torch.einsum("bhqd,bkd->bhqk", q, k) * (Dh ** -0.5)
        p = _softmax(scores, axis=-1)
        o = torch.einsum("bhqk,bkd->bhqd", p, v)
        return (lambda x, *d: x.permute(*d))(o, 0, 2, 1, 3).reshape(B, S, H * Dh) @ wo

    def _B_ref(x, wq, wk, wv, wo):
        B, S, D = x.shape
        H = 16
        Dh = D // H
        q = (lambda x, *d: x.permute(*d))((x @ wq).reshape(B, S, H, Dh), 0, 2, 1, 3)
        k = x @ wk
        v = x @ wv
        scores = torch.einsum("bhqd,bkd->bhqk", q, k) * (Dh ** -0.5)
        p = _softmax(scores, axis=-1)
        o = torch.einsum("bhqk,bkd->bhqd", p, v)
        return (lambda x, *d: x.permute(*d))(o, 0, 2, 1, 3).reshape(B, S, H * Dh) @ wo

    x = A_x
    g = _sigmoid((x * gate_w).sum(-1, keepdims=True))
    a = _A_ref(x, A_wq, A_wk, A_wv, A_wo)
    b = _B_ref(x, B_wq, B_wk, B_wv, B_wo)
    return g * a + (1 - g) * b
```

```python
class MB:
    def __init__(self, NW):
        self.NW=NW; self.kernels=[]
    def kernel(self, name, body, iters, nvgpr=128, nagpr=0, init="", lds=0):
        tot=nvgpr+nagpr
        s=f"""
.text
.globl {name}
.p2align 8
.type {name},@function
{name}:
    s_load_dwordx2 s[4:5], s[0:1], 0
    s_load_dwordx2 s[6:7], s[0:1], 8
    v_lshrrev_b32 v1, 6, v0
    s_nop 1
    v_readfirstlane_b32 s12, v1
    v_and_b32 v1, 63, v0
    v_cvt_f32_u32 v2, v1
    v_mul_f32 v2, 0x3a83126f, v2
    v_mov_b32 v3, v2
"""
        for r in range(4,nvgpr):
            s+=f"    v_mov_b32 v{r}, v2\n"
        for r in range(nagpr):
            s+=f"    v_accvgpr_write_b32 a{r}, v2\n"
        s+=f"""
    s_waitcnt lgkmcnt(0)
    s_mov_b32 s28, s4
    s_mov_b32 s29, s5
    s_mov_b32 s30, 0x4000000
    s_mov_b32 s31, 0x20000
"""
        s+=init
        s+=f"""
    s_waitcnt vmcnt(0) lgkmcnt(0)
    s_barrier
    s_memtime s[16:17]
    s_memrealtime s[20:21]
    s_mov_b32 s10, {iters}
    s_waitcnt lgkmcnt(0)
.p2align 6
L_{name}:
{body}
    s_sub_u32 s10, s10, 1
    s_cmp_lg_u32 s10, 0
    s_cbranch_scc1 L_{name}
    s_nop 15
    s_waitcnt vmcnt(0) lgkmcnt(0)
    s_memtime s[18:19]
    s_memrealtime s[22:23]
    s_waitcnt lgkmcnt(0)
    s_sub_u32 s18, s18, s16
    s_sub_u32 s22, s22, s20
    s_getreg_b32 s24, hwreg(HW_REG_HW_ID)
    s_getreg_b32 s25, hwreg(HW_REG_XCC_ID)
    s_and_b32 s24, s24, 0xffff
    s_and_b32 s25, s25, 0xf
    s_lshl_b32 s25, s25, 16
    s_or_b32 s24, s24, s25
    s_mov_b32 s8, s6
    s_mov_b32 s9, s7
    s_mov_b32 s10, 0x1000000
    s_mov_b32 s11, 0x20000
    s_mul_i32 s13, s2, {self.NW}
    s_add_u32 s13, s13, s12
    s_lshl_b32 s13, s13, 4
    v_mov_b32 v4, s18
    v_mov_b32 v5, s22
    v_mov_b32 v6, {iters}
    v_mov_b32 v7, s24
    v_mov_b32 v8, s13
    v_cmp_eq_u32 vcc, 0, v1
    s_and_saveexec_b64 s[14:15], vcc
    buffer_store_dwordx4 v[4:7], v8, s[8:11], 0 offen
    s_waitcnt vmcnt(0)
    s_endpgm
.section .rodata,"a"
.p2align 6
.amdhsa_kernel {name}
  .amdhsa_next_free_vgpr {tot}
  .amdhsa_next_free_sgpr 40
  .amdhsa_accum_offset {nvgpr}
  .amdhsa_group_segment_fixed_size 0
  .amdhsa_kernarg_size 16
  .amdhsa_user_sgpr_count 2
  .amdhsa_user_sgpr_kernarg_segment_ptr 1
  .amdhsa_system_sgpr_workgroup_id_x 1
.end_amdhsa_kernel
"""
        self.kernels.append((name,s,tot))
    def write(self, fn):
        out='.amdgcn_target "amdgcn-amd-amdhsa--gfx950"\n'
        for n,s,_ in self.kernels: out+=s
        out+=".amdgpu_metadata\n---\namdhsa.version: [1, 2]\namdhsa.kernels:\n"
        for n,s,v in self.kernels:
            out+=f"""  - .name: {n}
    .symbol: {n}.kd
    .kernarg_segment_size: 16
    .kernarg_segment_align: 8
    .group_segment_fixed_size: 0
    .private_segment_fixed_size: 0
    .wavefront_size: 64
    .sgpr_count: 40
    .vgpr_count: {v}
    .max_flat_workgroup_size: 1024
    .args:
      - {{.name: kin, .size: 8, .offset: 0, .value_kind: global_buffer, .address_space: global}}
      - {{.name: kout, .size: 8, .offset: 8, .value_kind: global_buffer, .address_space: global}}
"""
        out+="...\n.end_amdgpu_metadata\n"
        open(fn,"w").write(out)
        return [n for n,_,_ in self.kernels]
```

```python
import sys
from mbgen import MB
NW=int(sys.argv[1])
m=MB(NW)
J="\n".join
IT=200
def expsI(base,n): return [f"    v_exp_f32 v{base+i}, v{base+i}" for i in range(n)]
def mf(d,a,b,c):
    cs = "0" if c is None else f"v[{c}:{c+15}]"
    return f"    v_mfma_f32_32x32x16_bf16 v[{d}:{d+15}], v[{a}:{a+3}], v[{b}:{b+3}], {cs}"
def sm(d,a,b,idx=15):
    return f"    v_smfmac_f32_32x32x32_bf16 v[{d}:{d+15}], v[{a}:{a+3}], v[{b}:{b+7}], v{idx}"
def rd(dst,off): return f"    ds_read_b128 v[{dst}:{dst+3}], v14 offset:{off}"
init="""
    v_lshrrev_b32 v13, 9, v0
    v_lshlrev_b32 v13, 14, v13
    v_lshlrev_b32 v14, 4, v1
    v_add_u32 v14, v14, v13
    v_mov_b32 v15, 0xdddd
"""
S=[16,32]; O=48; Q=64; F=[72,88]
W0="    s_waitcnt lgkmcnt(0)"
def tile(t, reads=True, qk="mf", pv="sm", exps=True, order=0, prio=False):
    f=F[t&1]; fn=F[(t+1)&1]
    Sc=S[t&1]; Sn=S[(t+1)&1]
    off=(t%4)*4096
    R=[rd(fn,off+3072),rd(fn+4,off),rd(fn+8,off+1024),rd(fn+12,off+2048)] if reads else [None]*4
    e=expsI(Sc,16) if exps else [None]*16
    def PV(a,b):
        if pv=="sm": return sm(O,a,b)
        if pv=="mf": return mf(O,a,b,O)
        return None
    def QK(a,b,c):
        return mf(Sn,a,b,c) if qk=="mf" else None
    hp=lambda x: ["    s_setprio 1",x,"    s_setprio 0"] if (prio and x) else [x]
    if order==0:
        L=[W0 if reads else None,R[0]]+hp(PV(f,Sn+8))+e[0:4]+[R[1]]+hp(QK(f+4,Q,None))+e[4:8]+[R[2]]+hp(QK(f+8,Q+4,Sn))+e[8:12]+[R[3]]+hp(PV(f+12,Sc))+e[12:16]
    elif order==1:
        L=[W0 if reads else None]+R+hp(PV(f,Sn+8))+e[0:4]+hp(QK(f+4,Q,None))+e[4:8]+hp(QK(f+8,Q+4,Sn))+e[8:12]+hp(PV(f+12,Sc))+e[12:16]
    elif order==2:
        L=[W0 if reads else None,R[0]]+e[0:2]+hp(PV(f,Sn+8))+e[2:4]+[R[1]]+e[4:6]+hp(QK(f+4,Q,None))+e[6:8]+[R[2]]+e[8:10]+hp(QK(f+8,Q+4,Sn))+e[10:12]+[R[3]]+e[12:14]+hp(PV(f+12,Sc))+e[14:16]
    elif order==3:
        L=hp(PV(f,Sn+8))+e[0:4]+hp(QK(f+4,Q,None))+[R[0]]+e[4:8]+[R[1]]+hp(QK(f+8,Q+4,Sn))+[R[2]]+e[8:12]+hp(PV(f+12,Sc))+[R[3]]+e[12:16]+[W0 if reads else None]
    return [x for x in L if x]
def run(name, bar=False, **kw):
    body=[]
    for t in range(4): body+=tile(t,**kw)
    if bar: body.append("    s_barrier")
    m.kernel(name, J(body), IT, nvgpr=112, init=init)
run("base")
run("base_bar",bar=True)
run("noread",reads=False)
run("nopv",pv=None)
run("nopv_noread",pv=None,reads=False)
run("noqk_noread",qk=None,reads=False)
run("dense4",pv="mf")
run("dense4_noread",pv="mf",reads=False)
run("exponly",qk=None,pv=None,reads=False)
run("exp_reads",qk=None,pv=None)
run("noexp",exps=False)
run("o1",order=1)
run("o2",order=2)
run("o3",order=3)
run("prio",prio=True)
run("o2prio",order=2,prio=True)
print(" ".join(m.write(f"mb4_{NW}.s")))
```
